```python
import torch

def _softmax(x, axis=-1):
    return torch.softmax(x, dim=axis)
def _gelu(x):
    return torch.nn.functional.gelu(x, approximate="tanh")
def _silu(x):
    return torch.nn.functional.silu(x)
def _sigmoid(x):
    return torch.sigmoid(x)
def _layernorm(x, axis=-1, eps=1e-5):
    m = x.mean(dim=axis, keepdim=True)
    v = x.var(dim=axis, keepdim=True, unbiased=False)
    return (x - m) / torch.sqrt(v + eps)
def _scatter_add(tgt, idx, src, axis=0):
    return tgt.clone().index_add_(axis, idx, src)
def _segment_sum(src, seg, n):
    out = torch.zeros((n,) + src.shape[1:], dtype=src.dtype)
    return out.index_add_(0, seg, src)
def _pad(x, pw):
    flat = tuple(v for pair in reversed(pw) for v in pair)
    return torch.nn.functional.pad(x, flat)

kernel_name = 'parallel_sum__grouped_kv_mqa__dense_activation_squared_relu__prompt'

def setup_inputs():

    _w = (lambda a: (lambda t: t.to(torch.bfloat16) if t.is_floating_point() else t)(torch.as_tensor(a)))
    def _A_setup():
        B, S, D, H = 1, 2048, 640, 32
        Dh = D // H
        return {
            "x": _w((lambda *s: torch.randn(*s, dtype=torch.bfloat16) * 0.05)(B, S, D)),
            "wq": _w((lambda *s: torch.randn(*s, dtype=torch.bfloat16) * 0.2)(D, H * Dh)),
            "wk": _w((lambda *s: torch.randn(*s, dtype=torch.bfloat16) * 0.2)(D, Dh)),
            "wv": _w((lambda *s: torch.randn(*s, dtype=torch.bfloat16) * 0.1)(D, Dh)),
            "wo": _w((lambda *s: torch.randn(*s, dtype=torch.bfloat16) * 0.1)(H * Dh, D)),
        }
    _A_in = _A_setup()

    def _B_setup():
        B, S, D, F = 1, 2048, 640, 1728
        return {
            "x": _w((lambda *s: torch.randn(*s, dtype=torch.bfloat16) * 0.05)(B, S, D)),
            "w1": _w((lambda *s: torch.randn(*s, dtype=torch.bfloat16) * 0.1)(D, F)),
            "b1": _w((lambda *s: torch.randn(*s, dtype=torch.bfloat16) * 0.4)(F)),
            "w2": _w((lambda *s: torch.randn(*s, dtype=torch.bfloat16) * 0.1)(F, D)),
            "b2": _w((lambda *s: torch.randn(*s, dtype=torch.bfloat16) * 12.8)(D)),
        }
    _B_in = _B_setup()

    return {
        "A_x": _A_in["x"],
        "A_wq": _A_in["wq"],
        "A_wk": _A_in["wk"],
        "A_wv": _A_in["wv"],
        "A_wo": _A_in["wo"],
        "B_x": _B_in["x"],
        "B_w1": _B_in["w1"],
        "B_b1": _B_in["b1"],
        "B_w2": _B_in["w2"],
        "B_b2": _B_in["b2"],
    }

def reference(A_x, A_wq, A_wk, A_wv, A_wo, B_x, B_w1, B_b1, B_w2, B_b2):
    def _A_ref(x, wq, wk, wv, wo):
        B, S, D = x.shape
        H = 32
        Dh = D // H
        q = (lambda x, *d: x.permute(*d))((x @ wq).reshape(B, S, H, Dh), 0, 2, 1, 3)
        k = x @ wk
        v = x @ wv
        scores = torch.einsum("bhqd,bkd->bhqk", q, k) * (Dh ** -0.5)
        p = _softmax(scores, axis=-1)
        o = torch.einsum("bhqk,bkd->bhqd", p, v)
        return (lambda x, *d: x.permute(*d))(o, 0, 2, 1, 3).reshape(B, S, H * Dh) @ wo

    def _B_ref(x, w1, b1, w2, b2):
        h = torch.einsum("bsd,df->bsf", x, w1) + b1
        zero = torch.zeros_like(h)
        r = torch.where(h > zero, h, zero)
        h = r * r
        out = torch.einsum("bsf,fd->bsd", h, w2) + b2
        return out

    x = A_x
    xn = _layernorm(x, axis=-1)
    return x + _A_ref(xn, A_wq, A_wk, A_wv, A_wo) + _B_ref(xn, B_w1, B_b1, B_w2, B_b2)
```

```python
class Asm:
    def __init__(self):
        self.L = []
    def __call__(self, s):
        for line in s.split("\n"):
            line = line.rstrip()
            if not line.strip():
                continue
            if not line.strip().endswith(":") and not line.startswith("."):
                line = "    " + line.strip()
            self.L.append(line)
    def c(self, s):
        self.L.append("    ; " + s)
    def text(self):
        return "\n".join(self.L) + "\n"

def vr(b, n=1):
    return f"v{b}" if n == 1 else f"v[{b}:{b+n-1}]"
def ar(b, n=1):
    return f"a{b}" if n == 1 else f"a[{b}:{b+n-1}]"
def sr(b, n=1):
    return f"s{b}" if n == 1 else f"s[{b}:{b+n-1}]"

def srd(a, d, lo, hi, nrec):
    a(f"s_mov_b32 s{d}, {lo}")
    a(f"s_mov_b32 s{d+1}, {hi}")
    a(f"s_mov_b32 s{d+2}, {nrec}")
    a(f"s_mov_b32 s{d+3}, 0x20000")

def kernel_header(a, name):
    a(f".globl {name}")
    a(".p2align 8")
    a(f".type {name},@function")
    a(f"{name}:")

def kernel_desc(name, vgpr, sgpr, accum):
    return f""".p2align 6
.amdhsa_kernel {name}
  .amdhsa_next_free_vgpr {vgpr}
  .amdhsa_next_free_sgpr {sgpr}
  .amdhsa_accum_offset {accum}
  .amdhsa_group_segment_fixed_size 0
  .amdhsa_kernarg_size 104
  .amdhsa_user_sgpr_count 2
  .amdhsa_user_sgpr_kernarg_segment_ptr 1
  .amdhsa_system_sgpr_workgroup_id_x 1
.end_amdhsa_kernel
"""
```

```python
from asmlib import *
from layout import *

class VM:
    def __init__(self): self.ops = []
    def issue(self, tag): self.ops.append(tag)
    def need(self, tag):
        idx = max(i for i, t in enumerate(self.ops) if t == tag)
        return len(self.ops) - 1 - idx

def gen_k1(a):
    name = "k1_kernel"
    kernel_header(a, name)
    SX, SW, SB, SO = 20, 24, 28, 32
    sRB, sCG, sWV, sSTR, sCOL0, sSOFF, sCHS, sM0B = 36, 37, 38, 39, 40, 41, 42, 43
    sT = 44
    sTMP, sTMP2 = 54, 55
    sSTRT, sRTOFF, sTMAX = 56, 57, 58
    sEX = 60
    sSC = 62
    vLANE, vTOK, vG, vG1 = 1, 2, 3, 4
    vX0, vX1 = 5, 6
    vW = 7
    vTR = 12
    vT0, vT1, vT2, vT3 = 22, 23, 24, 25
    vONE = 28
    vACC = 32
    vCS = 112
    vSUM = 124
    vGR = 132
    vWF = 140
    vBI = 220
    vA = 240
    vLB = 244
    vAD = 245
    NV = 252
    def acc(slot, rt): return vACC + (slot * 2 + rt) * 4
    def wf(st, slot): return vWF + st * 40 + slot * 4
    def xf(s, rt): return (s * 2 + rt) * 4

    a("s_cmp_ge_u32 s2, 256")
    a("s_cbranch_scc1 K1_END")
    a("s_load_dwordx8 s[4:11], s[0:1], 0")
    a("s_load_dwordx4 s[12:15], s[0:1], 48")
    a("s_load_dwordx2 s[16:17], s[0:1], 96")
    a(f"s_and_b32 s{sTMP}, s2, 7")
    a(f"s_lshr_b32 s{sTMP2}, s2, 3")
    a(f"s_and_b32 s{sRB}, s{sTMP}, 3")
    a(f"s_lshl_b32 s{sRB}, s{sRB}, 2")
    a(f"s_and_b32 s{sCG}, s{sTMP2}, 3")
    a(f"s_add_u32 s{sRB}, s{sRB}, s{sCG}")
    a(f"s_lshr_b32 s{sCG}, s{sTMP}, 2")
    a(f"s_lshl_b32 s{sCG}, s{sCG}, 3")
    a(f"s_lshr_b32 s{sTMP2}, s{sTMP2}, 2")
    a(f"s_add_u32 s{sCG}, s{sCG}, s{sTMP2}")
    a(f"v_lshrrev_b32 v{vT0}, 6, v0")
    a(f"v_and_b32 v{vLANE}, 63, v0")
    a(f"v_readfirstlane_b32 s{sWV}, v{vT0}")
    a(f"v_and_b32 v{vTOK}, 15, v0")
    a(f"v_lshrrev_b32 v{vG}, 4, v{vLANE}")
    a(f"v_and_b32 v{vG1}, 1, v{vG}")
    for i in range(4):
        a(f"v_mov_b32 v{vONE+i}, 0x3f803f80")
    a(f"s_lshl_b32 s{sTMP}, s{sRB}, 7")
    a(f"s_lshl_b32 s{sTMP2}, s{sWV}, 5")
    a(f"s_add_u32 s{sTMP}, s{sTMP}, s{sTMP2}")
    a(f"v_add_u32 v{vT0}, s{sTMP}, v{vTOK}")
    a(f"v_mul_u32_u24 v{vX0}, 1280, v{vT0}")
    a(f"v_lshl_add_u32 v{vX0}, v{vG}, 4, v{vX0}")
    a(f"v_add_u32 v{vX1}, 20480, v{vX0}")
    a("s_waitcnt lgkmcnt(0)")
    srd(a, SX, "s4", "s5", 2048 * 1280)
    srd(a, SO, "s16", "s17", WS_SIZE)
    a(f"s_cmp_eq_u32 s{sCG}, 15")
    a("s_cbranch_scc1 K1_KV")
    a(f"s_cmp_lt_u32 s{sCG}, 4")
    a(f"s_cselect_b32 s{SW}, s6, s12")
    a(f"s_cselect_b32 s{SW+1}, s7, s13")
    a(f"s_mov_b32 s{SW+2}, {640*3456}")
    a(f"s_cmov_b32 s{SW+2}, {640*1280}")
    a(f"s_mov_b32 s{SW+3}, 0x20000")
    a(f"s_mov_b32 s{sSTR}, 3456")
    a(f"s_cmov_b32 s{sSTR}, 1280")
    a(f"s_cselect_b32 s{sTMP}, 0, 4")
    a(f"s_mov_b32 s{SB}, s14")
    a(f"s_mov_b32 s{SB+1}, s15")
    a(f"s_cselect_b32 s{SB+2}, 0, 3456")
    a(f"s_mov_b32 s{SB+3}, 0x20000")
    a(f"s_sub_u32 s{sTMP}, s{sCG}, s{sTMP}")
    a(f"s_mul_i32 s{sCOL0}, s{sTMP}, 160")
    a(f"s_lshl_b32 s{sCHS}, s{sSTR}, 6")
    a(f"s_mul_i32 s{sM0B}, s{sWV}, 5120")
    a(f"s_lshl_b32 s{sTMP}, s{sWV}, 4")
    a(f"s_mul_i32 s{sTMP}, s{sTMP}, s{sSTR}")
    a(f"s_lshl_b32 s{sTMP2}, s{sCOL0}, 1")
    a(f"s_add_u32 s{sTMP}, s{sTMP}, s{sTMP2}")
    for i in range(5):
        a(f"v_add_u32 v{vT0}, {i*64}, v{vLANE}")
        a(f"v_mul_u32_u24 v{vT1}, 3277, v{vT0}")
        a(f"v_lshrrev_b32 v{vT1}, 16, v{vT1}")
        a(f"v_mul_u32_u24 v{vT2}, 20, v{vT1}")
        a(f"v_sub_u32 v{vT2}, v{vT0}, v{vT2}")
        a(f"v_lshrrev_b32 v{vT3}, 3, v{vT1}")
        a(f"v_lshlrev_b32 v{vT3}, 1, v{vT3}")
        a(f"v_xor_b32 v{vT2}, v{vT2}, v{vT3}")
        a(f"v_mul_lo_u32 v{vT1}, v{vT1}, s{sSTR}")
        a(f"v_lshl_add_u32 v{vT1}, v{vT2}, 4, v{vT1}")
        a(f"v_add_u32 v{vW+i}, s{sTMP}, v{vT1}")
    vm = VM()
    def issue_group(c):
        ops = []
        slot = c % 7
        for i in range(5):
            L = []
            if i == 0:
                L.append(f"s_mul_i32 s{sSOFF}, s{sCHS}, {c}")
            L.append(f"s_add_u32 m0, s{sM0B}, {slot*20480 + i*1024}")
            L.append("s_nop 0")
            L.append(f"buffer_load_dwordx4 v{vW+i}, s[{SW}:{SW+3}], s{sSOFF} offen lds")
            ops.append(L)
        for ks in range(2):
            s = 2 * c + ks
            for rt in range(2):
                ops.append([f"buffer_load_dwordx4 {ar(xf(s,rt),4)}, v{vX0+rt}, s[{SX}:{SX+3}], 0 offen offset:{64*s}"])
        return ops
    for c in range(7):
        for op in issue_group(c):
            for l in op: a(l)
            vm.issue(("g", c))
    a(f"v_lshrrev_b32 v{vT0}, 2, v{vTOK}")
    a(f"v_lshl_add_u32 v{vT0}, v{vG}, 3, v{vT0}")
    a(f"v_mul_u32_u24 v{vT0}, 320, v{vT0}")
    a(f"v_and_b32 v{vT1}, 3, v{vLANE}")
    a(f"v_lshl_add_u32 v{vT0}, v{vT1}, 3, v{vT0}")
    a(f"s_mul_i32 s{sTMP}, s{sWV}, 3")
    a(f"s_min_u32 s{sTMP}, s{sTMP}, 7")
    for t in range(10):
        a(f"s_add_u32 s{sT+t}, s{sTMP}, {t}")
        a(f"s_cmp_ge_u32 s{sT+t}, 10")
        a(f"s_cselect_b32 s{sTMP2}, 10, 0")
        a(f"s_sub_u32 s{sT+t}, s{sT+t}, s{sTMP2}")
        a(f"v_xor_b32 v{vT1}, s{sT+t}, v{vG1}")
        a(f"v_lshl_add_u32 v{vTR+t}, v{vT1}, 5, v{vT0}")

    def reads(s):
        c = s // 2; ks = s % 2
        slot = c % 7
        base = (slot % 3) * 20480 + ks * 10240
        L = []
        for t in range(10):
            for h in range(2):
                L.append(f"ds_read_b64_tr_b16 {vr(wf(s&1,t)+2*h,2)}, v{vTR+t} offset:{base + h*1280}")
        return L
    def region_fix(s):
        if s % 2: return []
        c = s // 2
        if c in (3, 6): return [f"v_add_u32 v{vTR+t}, 61440, v{vTR+t}" for t in range(10)]
        if c == 7: return [f"v_subrev_u32 v{vTR+t}, 122880, v{vTR+t}" for t in range(10)]
        return []
    def mfmas(s):
        L = []
        st = s & 1
        def mf(d, A, B):
            c = "0" if s == 0 else vr(d, 4)
            L.append(f"v_mfma_f32_16x16x32_bf16 {vr(d,4)}, {A}, {B}, {c}")
        for rt in range(2):
            mf(vSUM + rt * 4, vr(vONE, 4), ar(xf(s, rt), 4))
            mf(vGR + rt * 4, ar(xf(s, rt), 4), ar(xf(s, rt), 4))
        for t in range(10):
            for rt in range(2):
                mf(acc(t, rt), vr(wf(st, t), 4), ar(xf(s, rt), 4))
            if t < 3:
                mf(vCS + t * 4, vr(wf(st, t), 4), vr(vONE, 4))
        return L

    a(f"s_waitcnt vmcnt({vm.need(('g',0))})")
    a("s_barrier")
    for l in reads(0): a(l)
    a("s_waitcnt lgkmcnt(0)")
    for s in range(20):
        c = s // 2
        extra = []
        if s % 2 == 1 and c < 9:
            a(f"s_waitcnt vmcnt({vm.need(('g',c+1))})")
            a("s_barrier")
            if c + 7 <= 9:
                extra = [(op, ("g", c + 7)) for op in issue_group(c + 7)]
            if c == 3:
                a(f"v_lshlrev_b32 v{vT0}, 3, v{vG}")
                a(f"s_lshl_b32 s{sTMP2}, s{sCOL0}, 1")
                for t in range(10):
                    extra.append(([f"s_lshl_b32 s{sTMP}, s{sT+t}, 5", f"s_add_u32 s{sTMP}, s{sTMP}, s{sTMP2}",
                                   f"buffer_load_dwordx2 {vr(vBI+2*t,2)}, v{vT0}, s[{SB}:{SB+3}], s{sTMP} offen"], "b"))
        M = mfmas(s)
        R = []
        if s < 19:
            for l in region_fix(s + 1): a(l)
            R = reads(s + 1)
        ri = 0; ei = 0
        for i, m in enumerate(M):
            a(m)
            n = 2 if i < 4 else 1
            for _ in range(n):
                if ri < len(R):
                    a(R[ri]); ri += 1
            if i >= 14 and ei < len(extra):
                for l in extra[ei][0]: a(l)
                vm.issue(extra[ei][1]); ei += 1
        assert ri == len(R) and ei == len(extra)
        if s < 19:
            a("s_waitcnt lgkmcnt(0)")
    a("s_nop 7")
    CSB = 7 * 20480
    a(f"v_cmp_eq_u32 vcc, 0, v{vTOK}")
    a(f"v_lshlrev_b32 v{vT0}, 4, v{vG}")
    a(f"v_add_u32 v{vT0}, {CSB}, v{vT0}")
    a(f"s_and_saveexec_b64 s[{sEX}:{sEX+1}], vcc")
    for t in range(3):
        a(f"s_lshl_b32 s{sTMP}, s{sT+t}, 6")
        a(f"v_add_u32 v{vT1}, s{sTMP}, v{vT0}")
        a(f"ds_write_b128 v{vT1}, {vr(vCS+t*4,4)}")
    a(f"s_mov_b64 exec, s[{sEX}:{sEX+1}]")
    stats(a, vLANE, vTOK, vSUM, vGR, vA, vT1, vT2, vT3)
    a("s_waitcnt lgkmcnt(0)")
    a("s_barrier")
    for t in range(10):
        a(f"s_lshl_b32 s{sTMP}, s{sT+t}, 6")
        a(f"v_add_u32 v{vT1}, s{sTMP}, v{vT0}")
        a(f"ds_read_b128 {vr(vWF+t*4,4)}, v{vT1}")
    a(f"s_lshl_b32 s{sTMP}, s{sRB}, 2")
    a(f"s_add_u32 s{sTMP}, s{sTMP}, s{sWV}")
    a(f"v_lshrrev_b32 v{vT2}, 1, v{vG}")
    a(f"s_cmp_lt_u32 s{sCG}, 4")
    a("s_cbranch_scc1 K1_EPI_Q")
    for mode in ("h", "q"):
        if mode == "q":
            a("K1_EPI_Q:")
            a(f"s_mul_i32 s{sTMP}, s{sTMP}, {32*1280}")
            a(f"s_lshl_b32 s{sTMP2}, s{sCOL0}, 1")
            a(f"s_add_u32 s{sTMP}, s{sTMP}, s{sTMP2}")
            a(f"s_add_u32 s{sTMP}, s{sTMP}, {WS_Q}")
            a(f"v_mul_u32_u24 v{vLB}, 1280, v{vTOK}")
            a(f"v_lshl_add_u32 v{vLB}, v{vT2}, 4, v{vLB}")
            a(f"v_add_u32 v{vLB}, s{sTMP}, v{vLB}")
            a(f"s_mov_b32 s{sSTRT}, 32")
            a(f"s_mov_b32 s{sRTOFF}, 20480")
            a(f"s_mov_b32 s{sTMAX}, 10")
            a(f"s_mov_b32 s{sSC}, {fbits(QSCALE)}")
            for i in range(4):
                a(f"v_mul_f32 v{vA+i}, s{sSC}, v{vA+i}")
        else:
            a(f"s_mul_i32 s{sTMP}, s{sTMP}, 108")
            a(f"s_lshr_b32 s{sTMP2}, s{sCOL0}, 4")
            a(f"s_add_u32 s{sTMP}, s{sTMP}, s{sTMP2}")
            a(f"s_lshl_b32 s{sTMP}, s{sTMP}, 10")
            a(f"s_add_u32 s{sTMP}, s{sTMP}, {WS_H}")
            a(f"v_lshlrev_b32 v{vLB}, 4, v{vTOK}")
            a(f"v_lshl_add_u32 v{vLB}, v{vT2}, 9, v{vLB}")
            a(f"v_add_u32 v{vLB}, s{sTMP}, v{vLB}")
            a(f"s_mov_b32 s{sSTRT}, 1024")
            a(f"s_mov_b32 s{sRTOFF}, 256")
            a(f"s_cmp_eq_u32 s{sCG}, 14")
            a(f"s_cselect_b32 s{sTMAX}, 8, 10")
        a(f"v_mov_b32 v{vT3}, 0x80000000")
        for u in range(5):
            a(f"s_sub_u32 s{sTMP}, s{sT+2*u+1}, s{sT+2*u}")
            a(f"v_mov_b32 v{vT1}, s{sT+2*u}")
            a(f"v_mad_i32_i24 v{vT1}, v{vG1}, s{sTMP}, v{vT1}")
            a(f"v_mad_u32_u24 v{vAD+u}, v{vT1}, s{sSTRT}, v{vLB}")
            a(f"v_cmp_gt_u32 vcc, s{sTMAX}, v{vT1}")
            a("s_nop 1")
            a(f"v_cndmask_b32 v{vAD+u}, v{vT3}, v{vAD+u}, vcc")
        a("s_waitcnt vmcnt(0) lgkmcnt(0)")
        vB4 = vWF + 40
        vPK = vWF + 48
        for u in range(5):
            for e in range(2):
                t = 2 * u + e
                if mode == "h":
                    a(f"v_lshlrev_b32 v{vB4}, 16, v{vBI+2*t}")
                    a(f"v_and_b32 v{vB4+1}, 0xffff0000, v{vBI+2*t}")
                    a(f"v_lshlrev_b32 v{vB4+2}, 16, v{vBI+2*t+1}")
                    a(f"v_and_b32 v{vB4+3}, 0xffff0000, v{vBI+2*t+1}")
                for rt in range(2):
                    A = acc(t, rt)
                    for i in range(4):
                        if mode == "h":
                            a(f"v_fma_f32 v{A+i}, v{vA+rt}, v{A+i}, v{vB4+i}")
                        else:
                            a(f"v_mul_f32 v{A+i}, v{vA+rt}, v{A+i}")
                    for i in range(4):
                        a(f"v_fmac_f32 v{A+i}, v{vA+2+rt}, v{vWF+t*4+i}")
                    if mode == "h":
                        for i in range(4):
                            a(f"v_max_f32 v{A+i}, 0, v{A+i}")
                        for i in range(4):
                            a(f"v_mul_f32 v{A+i}, v{A+i}, v{A+i}")
                    P = vPK + (u & 1) * 8 + rt * 4 + e * 2
                    a(f"v_cvt_pk_bf16_f32 v{P}, v{A}, v{A+1}")
                    a(f"v_cvt_pk_bf16_f32 v{P+1}, v{A+2}, v{A+3}")
            a("s_nop 1")
            for rt in range(2):
                P = vPK + (u & 1) * 8 + rt * 4
                a(f"v_permlane16_swap_b32 v{P}, v{P+2}")
                a(f"v_permlane16_swap_b32 v{P+1}, v{P+3}")
            for rt in range(2):
                P = vPK + (u & 1) * 8 + rt * 4
                so = "0" if rt == 0 else f"s{sRTOFF}"
                a(f"buffer_store_dwordx4 {vr(P,4)}, v{vAD+u}, s[{SO}:{SO+3}], {so} offen")
        a("s_endpgm")

    a("K1_KV:")
    srd(a, SW, "s8", "s9", 25600)
    srd(a, SB, "s10", "s11", 25600)
    a(f"v_lshlrev_b32 v{vW}, 4, v{vLANE}")
    VOFF = 26624
    for m in range(2):
        for i in range(7):
            a(f"s_lshl_b32 s{sTMP}, s{sWV}, 10")
            a(f"s_add_u32 s{sTMP}, s{sTMP}, {i*4096}")
            a(f"s_min_u32 s{sTMP}, s{sTMP}, {25*1024}")
            a(f"s_add_u32 m0, s{sTMP}, {m*VOFF}")
            a("s_nop 0")
            S = SW if m == 0 else SB
            a(f"buffer_load_dwordx4 v{vW}, s[{S}:{S+3}], s{sTMP} offen lds")
    for s in range(20):
        for rt in range(2):
            a(f"buffer_load_dwordx4 {ar(xf(s,rt),4)}, v{vX0+rt}, s[{SX}:{SX+3}], 0 offen offset:{64*s}")
    a(f"v_lshrrev_b32 v{vT0}, 2, v{vTOK}")
    a(f"v_lshl_add_u32 v{vT0}, v{vG}, 3, v{vT0}")
    a(f"v_mul_u32_u24 v{vT0}, 40, v{vT0}")
    a(f"v_and_b32 v{vT1}, 3, v{vLANE}")
    a(f"v_lshl_add_u32 v{vTR}, v{vT1}, 3, v{vT0}")
    a(f"v_add_u32 v{vTR+1}, {VOFF}, v{vTR}")
    a(f"v_and_b32 v{vT1}, 1, v{vT1}")
    a(f"v_mul_u32_u24 v{vT1}, {VOFF}, v{vT1}")
    a(f"v_add3_u32 v{vTR+2}, v{vT0}, v{vT1}, 32")
    a("s_waitcnt vmcnt(40)")
    a("s_barrier")
    def kreads(s):
        L = []
        for t in range(3):
            for h in range(2):
                L.append(f"ds_read_b64_tr_b16 {vr(wf(s&1,t)+2*h,2)}, v{vTR+t} offset:{s*1280 + h*160}")
        return L
    for l in kreads(0): a(l)
    for s in range(20):
        a(f"s_waitcnt vmcnt({2*(19-s)}) lgkmcnt(0)")
        if s < 19:
            for l in kreads(s + 1): a(l)
        st = s & 1
        def mf(d, A, B):
            c = "0" if s == 0 else vr(d, 4)
            a(f"v_mfma_f32_16x16x32_bf16 {vr(d,4)}, {A}, {B}, {c}")
        for rt in range(2):
            mf(vSUM + rt * 4, vr(vONE, 4), ar(xf(s, rt), 4))
            mf(vGR + rt * 4, ar(xf(s, rt), 4), ar(xf(s, rt), 4))
        for t in range(3):
            for rt in range(2):
                mf(acc(t, rt), vr(wf(st, t), 4), ar(xf(s, rt), 4))
            mf(vCS + t * 4, vr(wf(st, t), 4), vr(vONE, 4))
    a("s_nop 7")
    stats(a, vLANE, vTOK, vSUM, vGR, vA, vT1, vT2, vT3)
    a(f"s_mul_i32 s{sTMP}, s{sRB}, {KV_CHUNK}")
    a(f"s_add_u32 s{sTMP}, s{sTMP}, {WS_KV}")
    vPK = vWF
    for t in range(3):
        for rt in range(2):
            A = acc(t, rt)
            for i in range(4):
                a(f"v_mul_f32 v{A+i}, v{vA+rt}, v{A+i}")
            for i in range(4):
                a(f"v_fmac_f32 v{A+i}, v{vA+2+rt}, v{vCS+t*4+i}")
            P = vPK + (t * 2 + rt) * 2
            a(f"v_cvt_pk_bf16_f32 v{P}, v{A}, v{A+1}")
            a(f"v_cvt_pk_bf16_f32 v{P+1}, v{A+2}, v{A+3}")
    a(f"v_cmp_eq_u32 vcc, 2, v{vG}")
    a(f"v_mov_b32 v{vT0}, 0x3f803f80")
    a("s_nop 0")
    for rt in range(2):
        for j in range(2):
            P = vPK + (2 * 2 + rt) * 2 + j
            a(f"v_cndmask_b32 v{P}, v{P}, v{vT0}, vcc")
    a(f"v_lshrrev_b32 v{vT0}, 1, v{vG}")
    a(f"v_lshlrev_b32 v{vT0}, 9, v{vT0}")
    a(f"v_lshl_add_u32 v{vT0}, v{vTOK}, 4, v{vT0}")
    a(f"v_lshl_add_u32 v{vT0}, v{vG1}, 3, v{vT0}")
    a(f"s_lshl_b32 s{sTMP2}, s{sWV}, 10")
    a(f"s_add_u32 s{sTMP2}, s{sTMP2}, s{sTMP}")
    for rt in range(2):
        P = vPK + (0 * 2 + rt) * 2
        a(f"buffer_store_dwordx2 {vr(P,2)}, v{vT0}, s[{SO}:{SO+3}], s{sTMP2} offen offset:{rt*256}")
    a(f"v_mov_b32 v{vT3}, 0x80000000")
    a(f"v_lshlrev_b32 v{vT1}, 3, v{vTOK}")
    a(f"v_cmp_eq_u32 vcc, 0, v{vG}")
    a(f"s_lshl_b32 s{sTMP2}, s{sWV}, 8")
    a(f"s_add_u32 s{sTMP2}, s{sTMP2}, s{sTMP}")
    a(f"v_cndmask_b32 v{vT1}, v{vT3}, v{vT1}, vcc")
    a(f"s_add_u32 s{sTMP2}, s{sTMP2}, 4096")
    for rt in range(2):
        P = vPK + (2 * 2 + rt) * 2
        a(f"buffer_store_dwordx2 {vr(P,2)}, v{vT1}, s[{SO}:{SO+3}], s{sTMP2} offen offset:{rt*128}")
    a(f"v_bfe_u32 v{vT0}, v{vTOK}, 2, 1")
    a(f"v_mul_u32_u24 v{vT0}, 384, v{vT0}")
    a(f"v_lshrrev_b32 v{vT1}, 3, v{vTOK}")
    a(f"v_lshl_add_u32 v{vT0}, v{vT1}, 3, v{vT0}")
    a(f"v_and_b32 v{vT1}, 3, v{vTOK}")
    a(f"v_lshl_add_u32 v{vT0}, v{vT1}, 1, v{vT0}")
    a(f"v_lshl_add_u32 v{vT0}, v{vG}, 6, v{vT0}")
    a(f"s_mul_i32 s{sTMP2}, s{sWV}, 1536")
    a(f"s_add_u32 s{sTMP2}, s{sTMP2}, s{sTMP}")
    a(f"s_add_u32 s{sTMP2}, s{sTMP2}, 5120")
    a(f"v_add_u32 v{vT1}, 192, v{vT0}")
    a(f"v_subrev_u32 v{vT2}, 1, v{vG}")
    a(f"v_cmp_gt_u32 vcc, 2, v{vT2}")
    a("s_nop 1")
    a(f"v_cndmask_b32 v{vT1}, v{vT3}, v{vT1}, vcc")
    for t, ad in ((1, vT0), (2, vT1)):
        for rt in range(2):
            P = vPK + (t * 2 + rt) * 2
            for r in range(4):
                op = "buffer_store_short" if r % 2 == 0 else "buffer_store_short_d16_hi"
                a(f"{op} v{P + r//2}, v{ad}, s[{SO}:{SO+3}], s{sTMP2} offen offset:{rt*768 + r*16}")
    a("K1_END:")
    a("s_endpgm")
    return kernel_desc(name, 256 + 160, 64, 256), f"; @launch kernel={name} grid=(256,1,1) block=(256,1,1) lds={7*20480+1024}"

def stats(a, vLANE, vTOK, vSUM, vGR, vA, vT1, vT2, vT3):
    a(f"v_and_b32 v{vT1}, 3, v{vLANE}")
    a(f"v_lshrrev_b32 v{vT2}, 2, v{vTOK}")
    a(f"v_lshl_add_u32 v{vT2}, v{vT2}, 4, v{vTOK}")
    a(f"v_lshlrev_b32 v{vT2}, 2, v{vT2}")
    for i in range(1, 4):
        a(f"v_cmp_eq_u32 vcc, {i}, v{vT1}")
        a("s_nop 1")
        for rt in range(2):
            a(f"v_cndmask_b32 v{vGR+rt*4}, v{vGR+rt*4}, v{vGR+rt*4+i}, vcc")
    for rt in range(2):
        a(f"ds_bpermute_b32 v{vGR+rt*4+1}, v{vT2}, v{vGR+rt*4}")
    for rt in range(2):
        a(f"v_mul_f32 v{vSUM+rt*4}, {fbits(1.0/640)}, v{vSUM+rt*4}")
    a("s_waitcnt lgkmcnt(0)")
    for rt in range(2):
        m = vSUM + rt * 4
        q = vGR + rt * 4 + 1
        a(f"v_mul_f32 v{q}, {fbits(1.0/640)}, v{q}")
        a(f"v_fma_f32 v{q}, -v{m}, v{m}, v{q}")
        a(f"v_max_f32 v{q}, 0, v{q}")
        a(f"v_add_f32 v{q}, {fbits(1e-5)}, v{q}")
        a(f"v_rsq_f32 v{vA+rt}, v{q}")
        a("s_nop 0")
        a(f"v_mul_f32 v{vA+2+rt}, v{m}, v{vA+rt}")
        a(f"v_sub_f32 v{vA+2+rt}, 0, v{vA+2+rt}")
```

```python
from asmlib import *
from layout import *

DELTA = 96.0
NM0 = 4
SLOT = 12288
NSLOT = 4
FB = NSLOT * SLOT
PATCH = 5120

def decode_wg(a, sTB, sHG, sTMP):
    a(f"s_and_b32 s{sTB}, s2, 7")
    a(f"s_lshl_b32 s{sTB}, s{sTB}, 3")
    a(f"s_lshr_b32 s{sTMP}, s2, 5")
    a(f"s_add_u32 s{sTB}, s{sTB}, s{sTMP}")
    a(f"s_lshr_b32 s{sHG}, s2, 3")
    a(f"s_and_b32 s{sHG}, s{sHG}, 3")

def gemm_setup(a, vLANE, vWO, vTR, vT0, vT1, vT2, sHG, sTMP, ldsbase_sgpr):
    a(f"s_mul_i32 s{sTMP}, s{sHG}, 320")
    for i in range(5):
        a(f"v_add_u32 v{vT0}, {i*64}, v{vLANE}")
        a(f"v_mul_u32_u24 v{vT1}, 3277, v{vT0}")
        a(f"v_lshrrev_b32 v{vT1}, 16, v{vT1}")
        a(f"v_mul_u32_u24 v{vT2}, 20, v{vT1}")
        a(f"v_sub_u32 v{vT2}, v{vT0}, v{vT2}")
        a(f"v_mul_u32_u24 v{vT1}, 1280, v{vT1}")
        a(f"v_lshl_add_u32 v{vT1}, v{vT2}, 4, v{vT1}")
        a(f"v_add_u32 v{vWO+i}, s{sTMP}, v{vT1}")
    a(f"v_lshrrev_b32 v{vT0}, 5, v{vLANE}")
    a(f"v_bfe_u32 v{vT1}, v{vLANE}, 2, 2")
    a(f"v_lshl_add_u32 v{vT0}, v{vT0}, 3, v{vT1}")
    a(f"v_mul_u32_u24 v{vT0}, 320, v{vT0}")
    a(f"v_bfe_u32 v{vT1}, v{vLANE}, 4, 1")
    a(f"v_and_b32 v{vT2}, 3, v{vLANE}")
    a(f"v_lshl_add_u32 v{vT1}, v{vT1}, 2, v{vT2}")
    a(f"v_mul_u32_u24 v{vT1}, 40, v{vT1}")
    a(f"v_add3_u32 v{vTR}, v{vT0}, v{vT1}, s{ldsbase_sgpr}")

def gen_k2(a):
    name = "k2_kernel"
    kernel_header(a, name)
    SWS, SKV, SW2, SX, SB2 = 20, 24, 28, 32, 36
    sTB, sHG, sWV, sTMP, sTMP2 = 40, 41, 42, 43, 44
    sKVO, sKVM, sIT = 45, 46, 47
    sEX = 48
    sFW, sLB, sWOFF, sHOFF = 50, 51, 52, 53
    sPERM = 54
    vLANE, vT0, vT1, vT2, vKVS = 1, 2, 3, 4, 5

    a("s_cmp_ge_u32 s2, 256")
    a("s_cbranch_scc1 K2_END")
    a("s_load_dwordx2 s[4:5], s[0:1], 0")
    a("s_load_dwordx4 s[8:11], s[0:1], 64")
    a("s_load_dwordx2 s[16:17], s[0:1], 96")
    decode_wg(a, sTB, sHG, sTMP)
    a(f"v_lshrrev_b32 v{vT0}, 6, v0")
    a(f"v_and_b32 v{vLANE}, 63, v0")
    a(f"v_readfirstlane_b32 s{sWV}, v{vT0}")
    a(f"v_lshlrev_b32 v{vKVS}, 4, v0")
    a("s_waitcnt lgkmcnt(0)")
    srd(a, SWS, "s16", "s17", WS_SIZE)
    a(f"s_add_u32 s{SKV}, s16, {WS_KV}")
    a(f"s_addc_u32 s{SKV+1}, s17, 0")
    a(f"s_mov_b32 s{SKV+2}, {16*KV_CHUNK}")
    a(f"s_mov_b32 s{SKV+3}, 0x20000")
    a(f"s_lshl_b32 s{sKVM}, s{sWV}, 10")
    for c in range(3):
        a(f"s_add_u32 m0, s{sKVM}, {c*SLOT}")
        a(f"s_mov_b32 s{sKVO}, {c*KV_CHUNK}")
        a(f"buffer_load_dwordx4 v{vKVS}, s[{SKV}:{SKV+3}], s{sKVO} offen lds")
    a(f"s_cmp_ge_u32 s{sWV}, 8")
    a("s_cbranch_scc1 K2_FFN")

    QM, QA, QB = 8, 12, 16
    S = [20, 36]
    O = 52
    P = 68
    E = 76
    KM, KT, V0, V1 = 84, 88, 92, 96
    vKa, vKt, vVa = 100, 101, 102
    vHI = 103
    vTOK = 104
    vM = 105
    a(f"v_and_b32 v{vTOK}, 31, v{vLANE}")
    a(f"v_lshrrev_b32 v{vHI}, 5, v{vLANE}")
    a(f"v_mul_u32_u24 v{vT0}, 1280, v{vTOK}")
    a(f"v_lshl_add_u32 v{vT1}, v{vHI}, 4, v{vT0}")
    a(f"s_mul_i32 s{sTMP}, s{sTB}, {32*1280}")
    a(f"s_lshl_b32 s{sTMP2}, s{sHG}, 3")
    a(f"s_add_u32 s{sTMP2}, s{sTMP2}, s{sWV}")
    a(f"s_mul_i32 s{sTMP2}, s{sTMP2}, 40")
    a(f"s_add_u32 s{sTMP}, s{sTMP}, s{sTMP2}")
    a(f"s_add_u32 s{sTMP}, s{sTMP}, {WS_Q}")
    a(f"buffer_load_dwordx4 {vr(QM,4)}, v{vT1}, s[{SWS}:{SWS+3}], s{sTMP} offen")
    a(f"buffer_load_dwordx2 {vr(E,2)}, v{vT0}, s[{SWS}:{SWS+3}], s{sTMP} offen offset:32")
    a(f"v_lshlrev_b32 v{vKa}, 4, v{vLANE}")
    a(f"v_lshlrev_b32 v{vKt}, 3, v{vLANE}")
    a(f"v_mul_u32_u24 v{vVa}, 384, v{vHI}")
    a(f"v_lshl_add_u32 v{vVa}, v{vTOK}, 4, v{vVa}")
    a(f"v_mov_b32 v{KT+2}, 0x3f80")
    a(f"v_mov_b32 v{KT+3}, 0")
    for i in range(16): a(f"v_mov_b32 v{O+i}, 0")
    for i in range(4):
        a(f"v_mov_b32 v{V1+i}, 0")
        a(f"v_mov_b32 v{E+4+i}, 0")
    a(f"v_mov_b32 v{P+4}, 0")
    a(f"v_mov_b32 v{P+5}, 0")
    a(f"v_mov_b32 v{QA+2}, 0")
    a(f"v_mov_b32 v{QA+3}, 0")
    a(f"v_mov_b32 v{QB+2}, 0")
    a(f"v_mov_b32 v{QB+3}, 0")
    a(f"v_cmp_eq_u32 vcc, 0, v{vHI}")
    a("s_waitcnt vmcnt(0)")
    a("s_nop 1")
    for j in range(2):
        a(f"v_cndmask_b32 v{QA+j}, 0, v{E+j}, vcc")
        a(f"v_cndmask_b32 v{QB+j}, v{E+j}, 0, vcc")
    a("s_barrier")
    def km_off(t): return ((t // 4) % NSLOT) * SLOT + (t % 4) * 1024
    def kt_off(t): return ((t // 4) % NSLOT) * SLOT + 4096 + ((t % 4) // 2) * 512
    def v_off(t, mf): return ((t // 4) % NSLOT) * SLOT + 5120 + ((t % 4) * 2 + mf) * 768
    def qk0(t): return f"v_mfma_f32_32x32x16_bf16 {vr(S[t&1],16)}, {vr(KM,4)}, {vr(QM,4)}, 0"
    def qk1(t): return f"v_mfma_f32_32x32x16_bf16 {vr(S[t&1],16)}, {vr(KT,4)}, {vr(QA if t%2==0 else QB,4)}, {vr(S[t&1],16)}"
    for t in range(NM0):
        a(f"ds_read_b128 {vr(KM,4)}, v{vKa} offset:{km_off(t)}")
        if t % 2 == 0:
            a(f"ds_read_b64 {vr(KT,2)}, v{vKt} offset:{kt_off(t)}")
        a("s_waitcnt lgkmcnt(0)")
        a(qk0(t)); a(qk1(t))
        if t > 0:
            Sp = S[(t - 1) & 1]
            for i in range(8):
                if t == 1 and i == 0:
                    a(f"v_max_f32 v{vM}, v{Sp}, v{Sp+1}")
                else:
                    a(f"v_max3_f32 v{vM}, v{Sp+2*i}, v{Sp+2*i+1}, v{vM}")
        else:
            a("s_nop 7")
        a("s_nop 3")
    Sp = S[(NM0 - 1) & 1]
    a("s_nop 7")
    for i in range(8):
        a(f"v_max3_f32 v{vM}, v{Sp+2*i}, v{Sp+2*i+1}, v{vM}")
    a(f"v_mov_b32 v{vT0}, v{vM}")
    a("s_nop 1")
    a(f"v_permlane32_swap_b32 v{vT0}, v{vM}")
    a("s_nop 1")
    a(f"v_max_f32 v{vM}, v{vM}, v{vT0}")
    a(f"v_add_f32 v{vM}, {fbits(DELTA)}, v{vM}")
    a(f"v_sub_f32 v{vM}, 0, v{vM}")
    a(f"v_cvt_pk_bf16_f32 v{vM}, v{vM}, 0")
    a(f"v_cmp_eq_u32 vcc, 0, v{vHI}")
    a("s_nop 1")
    a(f"v_cndmask_b32 v{QA+2}, 0, v{vM}, vcc")
    a(f"v_cndmask_b32 v{QB+2}, v{vM}, 0, vcc")
    a(f"ds_read_b128 {vr(KM,4)}, v{vKa} offset:{km_off(0)}")
    a(f"ds_read_b64 {vr(KT,2)}, v{vKt} offset:{kt_off(0)}")
    a("s_waitcnt lgkmcnt(0)")
    a(qk0(0)); a(qk1(0))
    a(f"ds_read_b128 {vr(KM,4)}, v{vKa} offset:{km_off(1)}")
    a(f"s_mov_b32 s{sKVO}, {3*KV_CHUNK}")
    a(f"s_mov_b32 s{sIT}, 4")
    a("s_nop 7")
    a("s_waitcnt lgkmcnt(0)")
    a(".p2align 6")
    a("K2_ALOOP:")
    def exps(t, g):
        return [f"v_exp_f32 v{E+(g&1)*4+i}, v{S[t&1]+g*4+i}" for i in range(4)]
    def cvts(g):
        return [f"v_cvt_pk_bf16_f32 v{P+g*2+j}, v{E+(g&1)*4+2*j}, v{E+(g&1)*4+2*j+1}" for j in range(2)]
    pv0 = f"v_mfma_f32_32x32x16_bf16 {vr(O,16)}, {vr(V0,4)}, {vr(P,4)}, {vr(O,16)}"
    pv1 = f"v_mfma_f32_32x32x16_bf16 {vr(O,16)}, {vr(V1,4)}, {vr(P+4,4)}, {vr(O,16)}"
    for t in range(16):
        kt_prev = (t % 2 == 1)
        if t % 4 == 2:
            c = t // 4
            a("s_waitcnt vmcnt(1)")
            a("s_barrier")
            a(f"s_add_u32 m0, s{sKVM}, {((c+3)%NSLOT)*SLOT}")
            a("s_nop 0")
            a(f"buffer_load_dwordx4 v{vKVS}, s[{SKV}:{SKV+3}], s{sKVO} offen lds")
            a(f"s_add_u32 s{sKVO}, s{sKVO}, {KV_CHUNK}")
        a(f"s_waitcnt lgkmcnt({2 if kt_prev else 1})")
        a(qk0(t + 1))
        a(f"ds_read_b128 {vr(V0,4)}, v{vVa} offset:{v_off(t,0)}")
        for l in cvts(3) + exps(t, 0): a(l)
        a(f"s_waitcnt lgkmcnt({2 if kt_prev else 1})")
        a(pv1)
        a(f"ds_read_b128 {vr(KM,4)}, v{vKa} offset:{km_off(t+2)}")
        for l in cvts(0) + exps(t, 1): a(l)
        if kt_prev:
            a("s_waitcnt lgkmcnt(2)")
        a(qk1(t + 1))
        a(f"ds_read_b128 {vr(V1,4)}, v{vVa} offset:{v_off(t,1)}")
        for l in cvts(1) + exps(t, 2): a(l)
        a("s_waitcnt lgkmcnt(2)")
        a(pv0)
        if t % 2 == 0:
            a(f"ds_read_b64 {vr(KT,2)}, v{vKt} offset:{kt_off(t+2)}")
        for l in cvts(2) + exps(t, 3): a(l)
    a(f"s_sub_u32 s{sIT}, s{sIT}, 1")
    a(f"s_cmp_lg_u32 s{sIT}, 0")
    a("s_cbranch_scc1 K2_ALOOP")
    for l in cvts(3): a(l)
    a("s_waitcnt lgkmcnt(0)")
    a("s_nop 1")
    a(pv1)
    a(f"s_lshl_b32 s{sTMP2}, s{sHG}, 3")
    a(f"s_add_u32 s{sTMP2}, s{sTMP2}, s{sWV}")
    a(f"s_mul_i32 s{sTMP2}, s{sTMP2}, 5")
    a(f"s_mul_i32 s{sTMP}, s{sTB}, {40*1024}")
    a(f"s_add_u32 s{sTMP}, s{sTMP}, {WS_O}")
    vAD = S[0]
    for k in range(3):
        a(f"v_add_u32 v{vT0}, s{sTMP2}, v{vHI}")
        if k: a(f"v_add_u32 v{vT0}, {2*k}, v{vT0}")
        a(f"v_lshrrev_b32 v{vT1}, 1, v{vT0}")
        a(f"v_lshlrev_b32 v{vT1}, 9, v{vT1}")
        a(f"v_and_b32 v{vT0}, 1, v{vT0}")
        a(f"v_lshl_add_u32 v{vT1}, v{vT0}, 3, v{vT1}")
        a(f"v_lshl_add_u32 v{vAD+k}, v{vTOK}, 4, v{vT1}")
    a(f"v_cmp_eq_u32 vcc, 0, v{vHI}")
    a(f"v_mov_b32 v{vT0}, 0x80000000")
    a("s_nop 0")
    a(f"v_cndmask_b32 v{vAD+2}, v{vT0}, v{vAD+2}, vcc")
    a(f"v_mov_b32 v{vT0}, v{O+8}")
    a(f"v_mov_b32 v{vT1}, v{O+8}")
    a("s_nop 1")
    a(f"v_permlane32_swap_b32 v{vT0}, v{vT1}")
    a("s_nop 1")
    a(f"v_rcp_f32 v{vT0}, v{vT1}")
    a("s_nop 0")
    for i in range(12):
        a(f"v_mul_f32 v{O+i}, v{vT0}, v{O+i}")
    for i in range(6):
        a(f"v_cvt_pk_bf16_f32 v{P+i}, v{O+2*i}, v{O+2*i+1}")
    for k in range(3):
        a(f"buffer_store_dwordx2 {vr(P+2*k,2)}, v{vAD+k}, s[{SWS}:{SWS+3}], s{sTMP} offen")
    a("s_endpgm")

    a("K2_FFN:")
    vWO = 6
    vTR = 11
    vHO = 12
    ACC = 16
    WF = 96
    HF = 136
    srd(a, SW2, "s8", "s9", 1728 * 1280)
    srd(a, SX, "s4", "s5", 2048 * 1280)
    srd(a, SB2, "s10", "s11", 1280)
    a(f"s_sub_u32 s{sFW}, s{sWV}, 8")
    a(f"s_mul_i32 s{sLB}, s{sFW}, {4*PATCH}")
    a(f"s_add_u32 s{sLB}, s{sLB}, {FB}")
    gemm_setup(a, vLANE, vWO, vTR, vT0, vT1, vT2, sHG, sTMP, sLB)
    a(f"s_mul_i32 s{sWOFF}, s{sFW}, {27*16*1280}")
    a(f"s_mul_i32 s{sHOFF}, s{sTB}, 108")
    a(f"s_mul_i32 s{sTMP}, s{sFW}, 27")
    a(f"s_add_u32 s{sHOFF}, s{sHOFF}, s{sTMP}")
    a(f"s_lshl_b32 s{sHOFF}, s{sHOFF}, 10")
    a(f"s_add_u32 s{sHOFF}, s{sHOFF}, {WS_H}")
    a(f"v_lshlrev_b32 v{vHO}, 4, v{vLANE}")
    def floads(k):
        b = k % 4
        for i in range(5):
            a(f"s_add_u32 m0, s{sLB}, {b*PATCH + i*1024}")
            a("s_nop 0")
            a(f"buffer_load_dwordx4 v{vWO+i}, s[{SW2}:{SW2+3}], s{sWOFF} offen lds")
        a(f"buffer_load_dwordx4 {vr(HF+b*4,4)}, v{vHO}, s[{SWS}:{SWS+3}], s{sHOFF} offen")
        a(f"s_add_u32 s{sWOFF}, s{sWOFF}, {16*1280}")
        a(f"s_add_u32 s{sHOFF}, s{sHOFF}, 1024")
    def freads(k):
        b = k % 4
        for C in range(5):
            for h in range(2):
                a(f"ds_read_b64_tr_b16 {vr(WF+(k&1)*20+C*4+2*h,2)}, v{vTR} offset:{b*PATCH + h*1280 + C*8}")
    def fmf(k):
        b = k % 4
        for C in range(5):
            c = "0" if k == 0 else vr(ACC + C * 16, 16)
            a(f"v_mfma_f32_32x32x16_bf16 {vr(ACC+C*16,16)}, {vr(WF+(k&1)*20+C*4,4)}, {vr(HF+b*4,4)}, {c}")
    floads(0); floads(1)
    a("s_waitcnt vmcnt(12)")
    a("s_barrier")
    a(f"s_mov_b32 s{sKVO}, {3*KV_CHUNK}")
    RED = FB
    for c in range(16):
        a("s_waitcnt vmcnt(0) lgkmcnt(0)")
        a("s_barrier")
        a(f"s_add_u32 m0, s{sKVM}, {((c+3)%NSLOT)*SLOT}")
        a("s_nop 0")
        a(f"buffer_load_dwordx4 v{vKVS}, s[{SKV}:{SKV+3}], s{sKVO} offen lds")
        a(f"s_add_u32 s{sKVO}, s{sKVO}, {KV_CHUNK}")
        ks = [k for k in (2 * c, 2 * c + 1) if k < 27]
        for k in (2 * c + 2, 2 * c + 3):
            if k < 27: floads(k)
        for k in ks: freads(k)
        for i, k in enumerate(ks):
            a(f"s_waitcnt lgkmcnt({10*(len(ks)-1-i)})")
            fmf(k)
        if c == 13:
            a(f"v_and_b32 v{vT0}, 31, v{vLANE}")
            a(f"v_lshrrev_b32 v{vT1}, 5, v{vLANE}")
            a(f"v_mul_u32_u24 v{vT1}, 40, v{vT1}")
            a(f"v_mul_u32_u24 v{vT0}, 1280, v{vT0}")
            a(f"v_add_u32 v{vT0}, v{vT0}, v{vT1}")
            a(f"s_mul_i32 s{sTMP}, s{sHG}, 320")
            a(f"s_mul_i32 s{sTMP2}, s{sFW}, 80")
            a(f"s_add_u32 s{sTMP}, s{sTMP}, s{sTMP2}")
            a(f"s_mul_i32 s{sTMP2}, s{sTB}, {32*1280}")
            a(f"s_add_u32 s{sTMP2}, s{sTMP2}, s{sTMP}")
            XB = WF + 20; BB = HF
            BB = 152
            for j, n in ((0, 4), (4, 4), (8, 2)):
                a(f"buffer_load_dwordx{n} {vr(XB+j,n)}, v{vT0}, s[{SX}:{SX+3}], s{sTMP2} offen offset:{j*4}")
                a(f"buffer_load_dwordx{n} {vr(BB+j,n)}, v{vT1}, s[{SB2}:{SB2+3}], s{sTMP} offen offset:{j*4}")
            a(f"v_lshlrev_b32 v{vT2}, 4, v{vLANE}")
            a(f"v_add_u32 v{vT2}, s{sLB}, v{vT2}")
            a("s_nop 7")
            a("s_nop 3")
            for q in range(20):
                a(f"ds_write_b128 v{vT2}, {vr(ACC+q*4,4)} offset:{q*1024}")
        if c == 14:
            a(f"s_lshl_b32 s{sTMP}, s{sFW}, 10")
            a(f"s_add_u32 s{sTMP}, s{sTMP}, {RED}")
            a(f"v_lshlrev_b32 v{vT2}, 4, v{vLANE}")
            a(f"v_add_u32 v{vT2}, s{sTMP}, v{vT2}")
            a(f"v_add_u32 v{vT1}, 40960, v{vT2}")
            for w in range(4):
                for C in range(5):
                    ad = vT2 if w < 2 else vT1
                    a(f"ds_read_b128 {vr(ACC+(w*5+C)*4,4)}, v{ad} offset:{(w%2)*20480 + C*4096}")
                if w == 1: a("s_waitcnt lgkmcnt(5)")
            XB = WF + 20; BB = 152
            for j in range(10):
                a(f"v_lshlrev_b32 v{WF+2*j}, 16, v{XB+j}")
                a(f"v_and_b32 v{WF+2*j+1}, 0xffff0000, v{XB+j}")
                a(f"v_lshlrev_b32 v{vT0}, 16, v{BB+j}")
                a(f"v_and_b32 v{vT1}, 0xffff0000, v{BB+j}")
                a(f"v_add_f32 v{WF+2*j}, v{WF+2*j}, v{vT0}")
                a(f"v_add_f32 v{WF+2*j+1}, v{WF+2*j+1}, v{vT1}")
            a("s_waitcnt lgkmcnt(0)")
            for w in range(4):
                for j in range(20):
                    a(f"v_add_f32 v{WF+j}, v{WF+j}, v{ACC+w*20+j}")
            a(f"s_lshl_b32 s{sTMP}, s{sTB}, 2")
            a(f"s_add_u32 s{sTMP}, s{sTMP}, s{sHG}")
            a(f"s_lshl_b32 s{sTMP}, s{sTMP}, 2")
            a(f"s_add_u32 s{sTMP}, s{sTMP}, s{sFW}")
            a(f"s_mul_i32 s{sTMP}, s{sTMP}, 5120")
            a(f"s_add_u32 s{sTMP}, s{sTMP}, {WS_Y}")
            for C in range(5):
                if C == 4: a(f"s_add_u32 s{sTMP}, s{sTMP}, 4096")
                a(f"buffer_store_dwordx4 {vr(WF+C*4,4)}, v{vHO}, s[{SWS}:{SWS+3}], s{sTMP} offen offset:{(C%4)*1024}")
    a("K2_END:")
    a("s_endpgm")
    return kernel_desc(name, 168, 64, 168), f"; @launch kernel={name} grid=(256,1,1) block=(768,1,1) lds={FB + 16*PATCH}"

def gen_k3(a):
    name = "k3_kernel"
    kernel_header(a, name)
    SWS, SWO, SOUT = 20, 24, 28
    sTB, sHG, sFW, sTMP, sTMP2 = 40, 41, 42, 43, 44
    sLB, sWOFF, sHOFF = 51, 52, 53
    vLANE, vT0, vT1, vT2 = 1, 2, 3, 4
    vWO, vTR, vHO = 6, 11, 12
    ACC = 16; WF = 96; HF = 136
    YB = 176
    NB = 7
    a("s_cmp_ge_u32 s2, 256")
    a("s_cbranch_scc1 K3_END")
    a("s_load_dwordx2 s[4:5], s[0:1], 32")
    a("s_load_dwordx2 s[6:7], s[0:1], 80")
    a("s_load_dwordx2 s[16:17], s[0:1], 96")
    decode_wg(a, sTB, sHG, sTMP)
    a(f"v_lshrrev_b32 v{vT0}, 6, v0")
    a(f"v_and_b32 v{vLANE}, 63, v0")
    a(f"v_readfirstlane_b32 s{sFW}, v{vT0}")
    a("s_nop 3")
    a(f"s_mul_i32 s{sLB}, s{sFW}, {NB*PATCH}")
    gemm_setup(a, vLANE, vWO, vTR, vT0, vT1, vT2, sHG, sTMP, sLB)
    a(f"s_mul_i32 s{sWOFF}, s{sFW}, {10*16*1280}")
    a(f"s_mul_i32 s{sHOFF}, s{sTB}, 40")
    a(f"s_mul_i32 s{sTMP}, s{sFW}, 10")
    a(f"s_add_u32 s{sHOFF}, s{sHOFF}, s{sTMP}")
    a(f"s_lshl_b32 s{sHOFF}, s{sHOFF}, 10")
    a(f"s_add_u32 s{sHOFF}, s{sHOFF}, {WS_O}")
    a(f"v_lshlrev_b32 v{vHO}, 4, v{vLANE}")
    a("s_waitcnt lgkmcnt(0)")
    srd(a, SWS, "s16", "s17", WS_SIZE)
    srd(a, SWO, "s4", "s5", 640 * 1280)
    srd(a, SOUT, "s6", "s7", 2048 * 1280)
    from k1 import VM
    vm = VM()
    def floads(k):
        b = k % NB
        for i in range(5):
            a(f"s_add_u32 m0, s{sLB}, {b*PATCH + i*1024}")
            a("s_nop 0")
            a(f"buffer_load_dwordx4 v{vWO+i}, s[{SWO}:{SWO+3}], s{sWOFF} offen lds")
            vm.issue(k)
        a(f"buffer_load_dwordx4 {vr(HF+k*4,4)}, v{vHO}, s[{SWS}:{SWS+3}], s{sHOFF} offen")
        vm.issue(k)
        a(f"s_add_u32 s{sWOFF}, s{sWOFF}, {16*1280}")
        a(f"s_add_u32 s{sHOFF}, s{sHOFF}, 1024")
    def freads(k):
        b = k % NB
        for C in range(5):
            for h in range(2):
                a(f"ds_read_b64_tr_b16 {vr(WF+(k&1)*20+C*4+2*h,2)}, v{vTR} offset:{b*PATCH + h*1280 + C*8}")
    def fmf(k):
        for C in range(5):
            c = "0" if k == 0 else vr(ACC + C * 16, 16)
            a(f"v_mfma_f32_32x32x16_bf16 {vr(ACC+C*16,16)}, {vr(WF+(k&1)*20+C*4,4)}, {vr(HF+k*4,4)}, {c}")
    for k in range(NB): floads(k)
    a(f"s_waitcnt vmcnt({vm.need(0)})")
    freads(0)
    for k in range(10):
        a("s_waitcnt lgkmcnt(0)")
        if k + NB < 10:
            floads(k + NB)
        if k + NB == 10:
            a(f"s_lshl_b32 s{sTMP}, s{sTB}, 2")
            a(f"s_add_u32 s{sTMP}, s{sTMP}, s{sHG}")
            a(f"s_lshl_b32 s{sTMP}, s{sTMP}, 2")
            a(f"s_add_u32 s{sTMP}, s{sTMP}, s{sFW}")
            a(f"s_mul_i32 s{sTMP}, s{sTMP}, 5120")
            a(f"s_add_u32 s{sTMP}, s{sTMP}, {WS_Y}")
            for C in range(5):
                if C == 4: a(f"s_add_u32 s{sTMP}, s{sTMP}, 4096")
                a(f"buffer_load_dwordx4 {vr(YB+C*4,4)}, v{vHO}, s[{SWS}:{SWS+3}], s{sTMP} offen offset:{(C%4)*1024}")
                vm.issue("y")
        if k < 9:
            a(f"s_waitcnt vmcnt({vm.need(k+1)})")
            freads(k + 1)
        fmf(k)
    a(f"v_add_u32 v{vT2}, s{sLB}, v{vHO}")
    a("s_nop 7")
    a("s_nop 3")
    for q in range(20):
        a(f"ds_write_b128 v{vT2}, {vr(ACC+q*4,4)} offset:{q*1024}")
    a(f"s_lshl_b32 s{sTMP}, s{sFW}, 10")
    a(f"v_add_u32 v{vT2}, s{sTMP}, v{vHO}")
    a(f"v_add_u32 v{vT1}, {2*NB*PATCH}, v{vT2}")
    a("s_waitcnt lgkmcnt(0)")
    a("s_barrier")
    for w in range(4):
        for C in range(5):
            ad = vT2 if w < 2 else vT1
            a(f"ds_read_b128 {vr(ACC+(w*5+C)*4,4)}, v{ad} offset:{(w%2)*NB*PATCH + C*4096}")
        if w == 1: a("s_waitcnt lgkmcnt(5)")
    a(f"v_and_b32 v{vT0}, 31, v{vLANE}")
    a(f"v_lshrrev_b32 v{vT1}, 5, v{vLANE}")
    a(f"v_mul_u32_u24 v{vT1}, 40, v{vT1}")
    a(f"v_mul_u32_u24 v{vT0}, 1280, v{vT0}")
    a(f"v_add_u32 v{vT0}, v{vT0}, v{vT1}")
    a(f"s_mul_i32 s{sTMP}, s{sHG}, 320")
    a(f"s_mul_i32 s{sTMP2}, s{sFW}, 80")
    a(f"s_add_u32 s{sTMP}, s{sTMP}, s{sTMP2}")
    a(f"s_mul_i32 s{sTMP2}, s{sTB}, {32*1280}")
    a(f"s_add_u32 s{sTMP2}, s{sTMP2}, s{sTMP}")
    a("s_waitcnt vmcnt(0) lgkmcnt(0)")
    for w in range(4):
        for j in range(20):
            a(f"v_add_f32 v{YB+j}, v{YB+j}, v{ACC+w*20+j}")
    for j in range(10):
        a(f"v_cvt_pk_bf16_f32 v{WF+j}, v{YB+2*j}, v{YB+2*j+1}")
    for j, n in ((0, 4), (4, 4), (8, 2)):
        a(f"buffer_store_dwordx{n} {vr(WF+j,n)}, v{vT0}, s[{SOUT}:{SOUT+3}], s{sTMP2} offen offset:{j*4}")
    a("K3_END:")
    a("s_endpgm")
    return kernel_desc(name, 200, 64, 200), f"; @launch kernel={name} grid=(256,1,1) block=(256,1,1) lds={4*NB*PATCH}"
```

```python
import struct, math
WS_Q = 0
WS_KV = 0x280000
KV_CHUNK = 11264
WS_H = 0x300000
WS_Y = 0xA00000
WS_O = 0x1000000
WS_SIZE = 0x2000000
QSCALE = math.log2(math.e) / math.sqrt(20.0)
def fbits(x):
    return "0x%08x" % struct.unpack("<I", struct.pack("<f", x))[0]
```

```python
import sys
sys.path.insert(0, "gen")
from asmlib import *
import k1, k2
NAME = "parallel_sum__grouped_kv_mqa__dense_activation_squared_relu__prompt"
def build(out):
    a = Asm()
    descs = []; launches = []
    for g in (k1.gen_k1, k2.gen_k2, k2.gen_k3):
        d, l = g(a)
        descs.append(d); launches.append(l)
    hdr = "; generated by gen/build.py (hand-written generator)\n" + "\n".join(launches) + "\n"
    txt = hdr + '.amdgcn_target "amdgcn-amd-amdhsa--gfx950"\n.text\n' + a.text() + '.section .rodata,"a"\n' + "".join(descs)
    open(out, "w").write(txt)
if __name__ == "__main__":
    out = sys.argv[1] if len(sys.argv) > 1 else f"cdna_kernels/{NAME}.s"
    build(out)
```
